```python
import torch

def _softmax(x, axis=-1):
    return torch.softmax(x, dim=axis)
def _gelu(x):
    return torch.nn.functional.gelu(x, approximate="tanh")
def _silu(x):
    return torch.nn.functional.silu(x)
def _sigmoid(x):
    return torch.sigmoid(x)
def _layernorm(x, axis=-1, eps=1e-5):
    m = x.mean(dim=axis, keepdim=True)
    v = x.var(dim=axis, keepdim=True, unbiased=False)
    return (x - m) / torch.sqrt(v + eps)
def _scatter_add(tgt, idx, src, axis=0):
    return tgt.clone().index_add_(axis, idx, src)
def _segment_sum(src, seg, n):
    out = torch.zeros((n,) + src.shape[1:], dtype=src.dtype)
    return out.index_add_(0, seg, src)
def _pad(x, pw):
    flat = tuple(v for pair in reversed(pw) for v in pair)
    return torch.nn.functional.pad(x, flat)

kernel_name = 'concat_heads__gqa_block_cached__gqa_block_cached__near_ridge'

def setup_inputs():

    _w = (lambda a: (lambda t: t.to(torch.bfloat16) if t.is_floating_point() else t)(torch.as_tensor(a)))
    def _A_setup():
        B, Sq, D = 8, 192, 640
        Hq, Hkv, Sk, Dh = 32, 32, 1024, 128
        assert Hq % Hkv == 0, (Hq, Hkv)
        return {
            "x": _w((lambda *s: torch.randn(*s, dtype=torch.bfloat16) * 0.8)(B, Sq, D)),
            "k_cache": _w((lambda *s: torch.randn(*s, dtype=torch.bfloat16) * 0.8)(B, Hkv, Sk, Dh)),
            "v_cache": _w((lambda *s: torch.randn(*s, dtype=torch.bfloat16) * 0.05)(B, Hkv, Sk, Dh)),
            "wq": _w((lambda *s: torch.randn(*s, dtype=torch.bfloat16) * 0.8)(D, Hq * Dh) * (D ** -0.5)),
            "wo": _w((lambda *s: torch.randn(*s, dtype=torch.bfloat16) * 0.05)(Hq * Dh, D) * ((Hq * Dh) ** -0.5)),
        }
    _A_in = _A_setup()

    def _B_setup():
        B, Sq, D = 8, 192, 640
        Hq, Hkv, Sk, Dh = 32, 32, 1024, 128
        assert Hq % Hkv == 0, (Hq, Hkv)
        return {
            "x": _w((lambda *s: torch.randn(*s, dtype=torch.bfloat16) * 0.8)(B, Sq, D)),
            "k_cache": _w((lambda *s: torch.randn(*s, dtype=torch.bfloat16) * 0.8)(B, Hkv, Sk, Dh)),
            "v_cache": _w((lambda *s: torch.randn(*s, dtype=torch.bfloat16) * 0.05)(B, Hkv, Sk, Dh)),
            "wq": _w((lambda *s: torch.randn(*s, dtype=torch.bfloat16) * 0.8)(D, Hq * Dh) * (D ** -0.5)),
            "wo": _w((lambda *s: torch.randn(*s, dtype=torch.bfloat16) * 0.05)(Hq * Dh, D) * ((Hq * Dh) ** -0.5)),
        }
    _B_in = _B_setup()

    return {
        "A_x": _A_in["x"],
        "A_k_cache": _A_in["k_cache"],
        "A_v_cache": _A_in["v_cache"],
        "A_wq": _A_in["wq"],
        "A_wo": _A_in["wo"],
        "B_x": _B_in["x"],
        "B_k_cache": _B_in["k_cache"],
        "B_v_cache": _B_in["v_cache"],
        "B_wq": _B_in["wq"],
        "B_wo": _B_in["wo"],
    }

def reference(A_x, A_k_cache, A_v_cache, A_wq, A_wo, B_x, B_k_cache, B_v_cache, B_wq, B_wo):
    def _A_ref(x, k_cache, v_cache, wq, wo):
        B, Sq, D = x.shape
        Hq, Dh = 32, 128
        Hkv = k_cache.shape[1]
        rep = Hq // Hkv
        q = (lambda x, *d: x.permute(*d))((x @ wq).reshape(B, Sq, Hq, Dh), 0, 2, 1, 3)
        k = (lambda x, n, axis: torch.repeat_interleave(x, n, dim=axis))(k_cache, rep, axis=1)
        v = (lambda x, n, axis: torch.repeat_interleave(x, n, dim=axis))(v_cache, rep, axis=1)
        scores = torch.einsum("bhqd,bhkd->bhqk", q, k) * (Dh ** -0.5)
        p = _softmax(scores, axis=-1)
        o = torch.einsum("bhqk,bhkd->bhqd", p, v)
        return (lambda x, *d: x.permute(*d))(o, 0, 2, 1, 3).reshape(B, Sq, Hq * Dh) @ wo

    def _B_ref(x, k_cache, v_cache, wq, wo):
        B, Sq, D = x.shape
        Hq, Dh = 32, 128
        Hkv = k_cache.shape[1]
        rep = Hq // Hkv
        q = (lambda x, *d: x.permute(*d))((x @ wq).reshape(B, Sq, Hq, Dh), 0, 2, 1, 3)
        k = (lambda x, n, axis: torch.repeat_interleave(x, n, dim=axis))(k_cache, rep, axis=1)
        v = (lambda x, n, axis: torch.repeat_interleave(x, n, dim=axis))(v_cache, rep, axis=1)
        scores = torch.einsum("bhqd,bhkd->bhqk", q, k) * (Dh ** -0.5)
        p = _softmax(scores, axis=-1)
        o = torch.einsum("bhqk,bhkd->bhqd", p, v)
        return (lambda x, *d: x.permute(*d))(o, 0, 2, 1, 3).reshape(B, Sq, Hq * Dh) @ wo

    a = _A_ref(A_x, A_k_cache, A_v_cache, A_wq, A_wo)
    b = _B_ref(B_x, B_k_cache, B_v_cache, B_wq, B_wo)
    return torch.concatenate([a, b], axis=-1)
```

```python
import re
def regs(tok):
    tok=tok.strip()
    m=re.fullmatch(r'([vas])\[(\d+):(\d+)\]',tok)
    if m: return [m.group(1)+str(i) for i in range(int(m.group(2)),int(m.group(3))+1)]
    m=re.fullmatch(r'-?([vas])(\d+)',tok)
    if m: return [m.group(1)+m.group(2)]
    if tok in('vcc','m0','exec'): return [tok]
    return []
def R(p,b,n=1): return f'{p}{b}' if n==1 else f'{p}[{b}:{b+n-1}]'
TRANS=('v_exp_f32','v_rcp_f32','v_log_f32','v_rsq_f32')
class I:
    def __init__(s,text):
        s.text=text; t=text.split(None,1); s.op=t[0]
        ops=[x.strip() for x in t[1].split(',')] if len(t)>1 else []
        ops=[o.split()[0] if o else o for o in ops]
        s.rd=[];s.wr=[];op=s.op
        s.kind='other'
        if op.endswith(':') or op.startswith('.') or op.startswith(';'): s.kind='meta'
        elif op.startswith('v_mfma'):
            s.kind='mfma'; s.wr=regs(ops[0]); s.a=regs(ops[1])+regs(ops[2]); s.c=regs(ops[3]); s.rd=s.a+s.c
            s.passes=8 if '32x32' in op else 4
        elif op.startswith('v_permlane') :
            s.kind='valu'; s.wr=regs(ops[0])+regs(ops[1]); s.rd=list(s.wr)
        elif op.startswith('v_'):
            s.kind='valu'; s.wr=regs(ops[0]); s.rd=sum([regs(o) for o in ops[1:]],[])
            if op.startswith('v_fmac'): s.rd+=s.wr
        elif op.startswith('ds_read'):
            s.kind='ds'; s.wr=regs(ops[0]); s.rd=regs(ops[1])
        elif op.startswith('ds_write'):
            s.kind='ds'; s.rd=sum([regs(o) for o in ops],[])
        elif op.startswith('buffer_load') or op.startswith('global_load'):
            s.kind='vmem'
            if ' lds' in text: s.rd=sum([regs(o) for o in ops],[])+['m0']; s.dma=True
            else: s.wr=regs(ops[0]); s.rd=sum([regs(o) for o in ops[1:]],[])
        elif op.startswith('buffer_store') or op.startswith('global_store') or op.startswith('buffer_atomic') or op.startswith('global_atomic'):
            s.kind='vmem'; s.rd=sum([regs(o) for o in ops],[]); s.store=regs(ops[0]) if op.startswith('buffer') else regs(ops[1])
        elif op.startswith('s_'):
            s.kind='salu'
            if op.startswith(('s_cmp','s_waitcnt','s_barrier','s_nop','s_cbranch','s_branch','s_endpgm','s_setprio','s_sleep')): s.rd=sum([regs(o) for o in ops],[])
            else: s.wr=regs(ops[0]); s.rd=sum([regs(o) for o in ops[1:]],[])
    def states(s):
        if s.kind=='meta': return 0
        if s.op=='s_nop': return int(s.text.split()[1])+1
        return 1
def need(p,c):
    n=0
    inter=lambda a,b: bool(set(a)&set(b))
    if p.kind=='valu':
        vw=[r for r in p.wr if r[0] in 'va' and r!='vcc']; sw=[r for r in p.wr if r[0]=='s' or r=='vcc']
        if c.kind=='mfma' and inter(vw,c.rd): n=max(n,2)
        if c.op.startswith('v_permlane') and inter(vw,c.rd): n=max(n,2)
        if c.op.startswith(('v_readfirstlane','v_readlane')) and inter(vw,c.rd): n=max(n,1)
        if p.op in TRANS and c.kind=='valu' and inter(vw,c.rd): n=max(n,1)
        if c.kind=='vmem' and inter(sw,c.rd): n=max(n,5)
        if c.kind=='valu' and inter(sw,c.rd): n=max(n,2)
        if c.kind=='salu' and inter(sw,c.rd): n=max(n,2)
        if c.op.startswith('s_cbranch_vcc') and 'vcc' in sw: n=max(n,5)
    if p.kind=='mfma':
        big={4:8,8:12}[p.passes]
        if c.kind=='mfma':
            if inter(p.wr,c.a): n=max(n,big)
            if inter(p.wr,c.c) and p.wr!=c.c: n=max(n,big-2)
        elif c.kind in('valu','vmem','ds'):
            if inter(p.wr,c.rd) or inter(p.wr,c.wr): n=max(n,big)
            if c.kind=='valu' and inter(p.c,c.wr): n=max(n,{4:3,8:7}[p.passes])
    if p.kind=='salu' and 'm0' in p.wr and getattr(c,'dma',False): n=max(n,1)
    if hasattr(p,'store') and len(p.store)>=3 and inter(p.store,c.wr): n=max(n,2)
    return n
class Prog:
    def __init__(s): s.L=[]; s.vq=[]; s.lq=[]
    def e(s,text,tag=None):
        for t in text.split('\n'):
            t=t.strip()
            if not t: continue
            i=I(t); s.L.append(i)
            if i.kind=='vmem': s.vq.append(tag)
            if i.kind=='ds': s.lq.append(tag)
    def nopfix(s,text,tag=None):
        c=I(text); d=0; req=0
        for p in reversed(s.L[-40:]):
            req=max(req,need(p,c)-d); d+=p.states()
            if d>20: break
        if req>0: s.e(f's_nop {req-1}')
        s.e(text,tag)
    def _wait(s,q,tags,name,mx):
        idx=[k for k,t in enumerate(q) if t in tags]
        if not idx: return None
        n=len(q)-1-max(idx); n=min(n,mx)
        del q[:len(q)-n]
        return f'{name}({n})'
    def wait(s,vm=(),lg=()):
        w=[x for x in (s._wait(s.vq,set(vm),'vmcnt',63),s._wait(s.lq,set(lg),'lgkmcnt',15)) if x]
        if w: s.e('s_waitcnt '+' '.join(w))
    def wait0(s,vm=True,lg=True):
        w=[]
        if vm: w.append('vmcnt(0)'); s.vq=[]
        if lg: w.append('lgkmcnt(0)'); s.lq=[]
        s.e('s_waitcnt '+' '.join(w))
    def text(s): return '\n'.join(('' if i.kind=='meta' else '  ')+i.text for i in s.L)+'\n'
def check(L,extra_edges=()):
    bad=[]
    def scan(seq):
        for k,c in enumerate(seq):
            d=0
            for p in reversed(seq[max(0,k-40):k]):
                if need(p,c)>d: bad.append((p.text,c.text,d,need(p,c)))
                d+=p.states()
                if d>20: break
    scan(L)
    lab={i.text[:-1]:k for k,i in enumerate(L) if i.kind=='meta' and i.text.endswith(':')}
    for k,i in enumerate(L):
        if i.op.startswith(('s_cbranch','s_branch')):
            t=lab[i.text.split()[1]]
            scan(L[max(0,k-30):k+1]+L[t:t+30])
    return bad
```

```python
from ir import *
import struct, math
def f2u(x): return struct.unpack('<I',struct.pack('<f',x))[0]
KADDR,VA0,VA1,DOFF=1,2,3,4
LSUM=5; NEGM=8; S0=20; KF=44; VF=76; T0=108
QACC=12; AF=0; XF=64; QF=96
U=[5,2,6,3,7,9,8]
def Sreg(qb,kb): return S0+8*qb+4*kb
def Oreg(db,qb): return (db*3+qb)*4
MF='v_mfma_f32_16x16x32_bf16'
def gen_attn(cfg):
    p=Prog(); e=p.e; nf=p.nopfix
    NT=' nt' if cfg.get('nt',1) else ''
    def dma_kv(which,t,H,unit,soff):
        srd='s[8:11]' if which=='K' else 's[12:15]'
        e(f's_add_u32 m0, s32, {unit*8192+H*(1024-128)}')
        return (f'buffer_load_dwordx4 v{DOFF}, {srd}, {soff} offen'+(' offset:128' if H else '')+NT+' lds',(which,t))
    def dma_kv_now(which,t,unit):
        e(f's_mov_b32 s38, {t*8192}')
        for H in (0,1):
            tx,tag=dma_kv(which,t,H,unit,'s38'); nf(tx,tag)
    def rd_k(t,kb,s): e(f'ds_read_b128 {R("v",KF+(kb*4+s)*4,4)}, v{KADDR} offset:{(t&3)*8192+kb*4096+(s>>1)*1024+(s&1)*512}',('k',t,kb,s))
    def rd_v(t,db,j2): e(f'ds_read_b64_tr_b16 {R("v",VF+db*4+2*j2,2)}, v{VA0+(db&1)} offset:{(4+(t&3))*8192+j2*4096+(db>>2)*1024+((db>>1)&1)*512}',('v',t,db))
    def qk(t,qb,kb,s,c0):
        p.wait(lg=[('k',t,kb,s)])
        c=c0 if s==0 else R('v',Sreg(qb,kb),4)
        e(f'{MF} {R("v",Sreg(qb,kb),4)}, {R("v",KF+(kb*4+s)*4,4)}, {R("a",QF+(qb*4+s)*4,4)}, {c}')
    def pv(t,qb,db):
        p.wait(lg=[('v',t,db)])
        o=R('a',Oreg(db,qb),4)
        e(f'{MF} {o}, {R("v",VF+db*4,4)}, {R("v",Sreg(qb,0),4)}, {o}')
    def sm_ops(qb):
        b=Sreg(qb,0); L=[]
        for k in range(8):
            L.append(('e',k,f'v_exp_f32 v{b+k}, v{b+k}'))
            L.append(('a',k,f'v_add_f32 v{LSUM+qb}, v{b+k}, v{LSUM+qb}'))
            if k&1: L.append(('c',k,f'v_cvt_pk_bf16_f32 v{b+k//2}, v{b+k-1}, v{b+k}'))
        return L
    e('attn_kernel:')
    e('s_cmp_ge_u32 s2, 512\ns_cbranch_scc1 A_END')
    e('s_load_dwordx8 s[40:47], s[0:1], 0\ns_load_dwordx8 s[48:55], s[0:1], 40\ns_load_dwordx2 s[56:57], s[0:1], 96')
    e('v_lshrrev_b32 v1, 6, v0\nv_and_b32 v0, 63, v0')
    nf('v_readfirstlane_b32 s3, v1')
    e('s_and_b32 s4, s2, 7\ns_lshr_b32 s5, s2, 3')
    if cfg.get('map',0)==0: e('s_lshr_b32 s6, s5, 5\ns_and_b32 s5, s5, 31')
    else: e('s_and_b32 s6, s5, 1\ns_lshr_b32 s5, s5, 1')
    e('s_and_b32 s7, s4, 1\ns_lshl_b32 s7, s7, 2\ns_and_b32 s38, s5, 3\ns_add_u32 s7, s7, s38')
    e('s_lshr_b32 s4, s4, 1\ns_lshl_b32 s4, s4, 3\ns_lshr_b32 s5, s5, 2\ns_add_u32 s4, s4, s5')
    e('s_lshl_b32 s32, s3, 11\ns_mov_b32 s33, 20480\ns_mov_b32 s34, 40960\ns_mov_b32 s36, 131072\ns_mov_b32 s37, 262144\ns_mov_b32 s31, 0')
    c=math.log2(math.e)/math.sqrt(128.0)
    e(f's_mov_b32 s58, {f2u(c):#x}\ns_mov_b32 s59, {f2u(c):#x}')
    e('v_and_b32 v6, 15, v0\nv_lshrrev_b32 v7, 4, v0\nv_bfe_u32 v8, v0, 2, 3\nv_lshrrev_b32 v9, 5, v0\nv_and_b32 v10, 3, v0')
    e('v_lshrrev_b32 v11, 1, v8\nv_and_b32 v11, 2, v11\nv_xor_b32 v11, v11, v10\nv_lshlrev_b32 v11, 4, v11\nv_lshl_add_u32 v11, v9, 6, v11\nv_lshl_add_u32 v11, v8, 8, v11')
    e(f'v_add_u32 v{DOFF}, s32, v11')
    e(f'v_lshlrev_b32 v11, 4, v10\nv_lshl_add_u32 v11, v9, 6, v11\nv_lshl_add_u32 v11, v8, 13, v11\ns_lshl_b32 s38, s3, 16\nv_add_u32 v{T0}, s38, v11')
    e(f's_mul_i32 s38, s3, 61440\nv_mul_u32_u24 v11, 1280, v6\nv_lshl_add_u32 v11, v7, 4, v11\nv_add_u32 v{T0+1}, s38, v11')
    e(f'v_lshrrev_b32 v11, 2, v6\nv_lshlrev_b32 v11, 6, v11\nv_lshl_add_u32 v11, v10, 4, v11\nv_lshl_add_u32 v{T0+2}, v7, 11, v11\nv_add_u32 v{T0+3}, 0x10000, v{T0+2}')
    e(f'v_and_b32 v11, 7, v6\nv_lshrrev_b32 v12, 1, v11\nv_and_b32 v12, 2, v12\nv_xor_b32 v12, v12, v7\nv_lshlrev_b32 v12, 4, v12\nv_lshl_add_u32 v12, v11, 6, v12\nv_lshrrev_b32 v11, 3, v6\nv_lshl_add_u32 v{KADDR}, v11, 11, v12')
    e(f'v_and_b32 v11, 1, v7\nv_lshrrev_b32 v12, 2, v6\nv_lshl_add_u32 v12, v11, 2, v12\nv_lshlrev_b32 v12, 6, v12\nv_lshl_add_u32 v12, v11, 5, v12\nv_lshl_add_u32 v12, v10, 3, v12\nv_lshrrev_b32 v11, 1, v7\nv_lshl_add_u32 v{VA0}, v11, 11, v12\nv_xor_b32 v{VA1}, 32, v{VA0}')
    e('s_waitcnt lgkmcnt(0)')
    e('s_cmp_eq_u32 s6, 0')
    for k in range(8): e(f's_cselect_b32 s{40+k}, s{40+k}, s{48+k}')
    e('s_lshl_b32 s38, s7, 5\ns_add_u32 s38, s38, s4\ns_lshl_b32 s38, s38, 18')
    e('s_add_u32 s8, s42, s38\ns_addc_u32 s9, s43, 0\ns_mov_b32 s10, 262144\ns_mov_b32 s11, 0x20000')
    e('s_add_u32 s12, s44, s38\ns_addc_u32 s13, s45, 0\ns_mov_b32 s14, 262144\ns_mov_b32 s15, 0x20000')
    e('s_mul_i32 s38, s7, 245760\ns_add_u32 s16, s40, s38\ns_addc_u32 s17, s41, 0\ns_mov_b32 s18, 245760\ns_mov_b32 s19, 0x20000')
    e('s_lshl_b32 s38, s4, 8\ns_add_u32 s20, s46, s38\ns_addc_u32 s21, s47, 0\ns_sub_u32 s22, 5242880, s38\ns_mov_b32 s23, 0x20000')
    e('s_mul_i32 s38, s7, 12\ns_mul_i32 s39, s3, 3\ns_add_u32 s38, s38, s39\ns_lshl_b32 s38, s38, 17\ns_mul_i32 s39, s6, 12582912\ns_add_u32 s38, s38, s39\ns_lshl_b32 s39, s4, 12\ns_add_u32 s38, s38, s39')
    e('s_add_u32 s24, s56, s38\ns_addc_u32 s25, s57, 0\ns_mov_b32 s26, 266240\ns_mov_b32 s27, 0x20000')
    if cfg.get('prio')==1: e('s_cmp_eq_u32 s6, 0\ns_cbranch_scc0 A_NOPRIO\ns_setprio 1\nA_NOPRIO:')
    def wq_dma(s,H):
        if H==0: e(f's_mov_b32 s35, {s*262144}')
        e(f's_add_u32 m0, s32, {U[s%7]*8192+H*(1024-128)}')
        nf(f'buffer_load_dwordx4 v{T0}, s[20:23], s35 offen'+(' offset:128' if H else '')+' lds',('w',s))
    def x_ld(s,qb):
        so=['0','s33','s34'][qb]
        e(f'buffer_load_dwordx4 {R("a",XF+((s%6)*3+qb)*4,4)}, v{T0+1}, s[16:19], {so} offen offset:{64*s}',('x',s))
    def rd_a(s,db,j2):
        u=U[s%7]; base=T0+2+(u>=8); sd=db>>1
        e(f'ds_read_b64_tr_b16 {R("a",AF+(s&1)*32+db*4+2*j2,2)}, v{base} offset:{(u&7)*8192+(sd>>1)*1024+(sd&1)*512+256*j2+8*(db&1)}',('A',s,db))
    wq_dma(0,0); wq_dma(0,1)
    for s in range(5):
        wq_dma(s+1,0); wq_dma(s+1,1)
        for qb in range(3): x_ld(s,qb)
    p.wait(vm=[('w',0)]); e('s_barrier')
    for db in range(8):
        for j2 in (0,1): rd_a(0,db,j2)
    early={cfg.get('kv0',4):('K',0,0),cfg.get('kv0',4)+1:('K',1,1),cfg.get('kv0',4)+2:('V',0,4),15:('V',1,5),16:('K',2,2),17:('V',2,6),18:('K',3,3)}
    for s in range(20):
        p.wait(vm=[('w',s+1),('x',s)]); e('s_barrier')
        fill={n:[] for n in range(24)}
        if s+1<20:
            for db in range(8):
                for j2 in (0,1): fill[2*db+j2].append(lambda db=db,j2=j2: rd_a(s+1,db,j2))
        if s+6<20:
            fill[1].append(lambda: wq_dma(s+6,0)); fill[5].append(lambda: wq_dma(s+6,1))
        if s+5<20:
            for qb in range(3): fill[9+4*qb].append(lambda qb=qb: x_ld(s+5,qb))
        if s in early: fill[20].append(lambda: dma_kv_now(*early[s]))
        n=0
        for db in range(8):
            for qb in range(3):
                p.wait(lg=[('A',s,db)])
                acc=R('v',QACC+(db*3+qb)*4,4)
                e(f'{MF} {acc}, {R("a",AF+(s&1)*32+db*4,4)}, {R("a",XF+((s%6)*3+qb)*4,4)}, {acc if s else 0}')
                for f in fill[n]: f()
                n+=1
    for db in range(8):
        for qb in range(3):
            b=QACC+(db*3+qb)*4
            for h in (0,1): nf(f'v_pk_mul_f32 v[{b+2*h}:{b+2*h+1}], v[{b+2*h}:{b+2*h+1}], s[58:59]')
            for h in (0,1): e(f'v_cvt_pk_bf16_f32 v{b+2*h}, v{b+2*h}, v{b+2*h+1}')
            for h in (0,1): e(f'v_accvgpr_write_b32 a{QF+(qb*4+(db>>1))*4+2*(db&1)+h}, v{b+2*h}')
    for qb in range(3): e(f'v_mov_b32 v{NEGM+4*qb}, 0xff800000')
    e('A_JOIN:')
    join_vq=list(p.vq)
    p.wait(vm=[('K',0),('K',1),('V',0)]); e('s_barrier')
    for s in range(4):
        for kb in (0,1): rd_k(0,kb,s)
    for k in range(96): e(f'v_accvgpr_write_b32 a{k}, 0')
    for qb in range(3): e(f'v_mov_b32 v{LSUM+qb}, 0')
    for qb in range(3):
        for s in range(4):
            for kb in (0,1): qk(0,qb,kb,s,'0')
    e('s_barrier')
    dma_kv_now('V',3,7); dma_kv_now('K',4,0)
    e('s_mov_b32 s29, 32768\ns_mov_b32 s28, 40960\ns_mov_b32 s30, 7')
    for db in range(8):
        for j2 in (0,1): rd_v(0,db,j2)
    for s in range(4):
        for kb in (0,1): rd_k(1,kb,s)
    for qb in range(3):
        b=Sreg(qb,0); m=NEGM+4*qb
        for k in range(4): nf(f'v_max3_f32 v{m}, v{b+2*k}, v{b+2*k+1}, v{m}')
        for sw in ('v_permlane16_swap_b32','v_permlane32_swap_b32'):
            e(f'v_mov_b32 v{m+1}, v{m}'); nf(f'{sw} v{m}, v{m+1}'); nf(f'v_max_f32 v{m}, v{m}, v{m+1}')
        e(f'v_sub_f32 v{m}, 0, v{m}')
        for k in range(1,4): e(f'v_mov_b32 v{m+k}, v{m}')
        for k in range(8): e(f'v_add_f32 v{b+k}, v{b+k}, v{m}')
    for qb in (0,1):
        for o in sm_ops(qb): nf(o[2])
    e('s_nop 1')
    def step(i,dma=True,last=False):
        fill={n:[] for n in range(48)}
        def place(qb,start,span):
            ops=sm_ops(qb)
            for kind,k,tx in ops:
                pos={'e':2*k,'a':2*k+1,'c':2*k+1}[kind]
                fill[start+pos*span//16].append(lambda tx=tx: nf(tx))
        place(2,cfg.get('sm2',1),16)
        if not last:
            place(0,cfg.get('sm0',17),16); place(1,cfg.get('sm1',33),15)
            for db in range(8):
                for j2 in (0,1): fill[32+db].append(lambda db=db,j2=j2: rd_v(i+1,db,j2))
            if i+2<32:
                for s in range(4):
                    for kb in (0,1): fill[40+2*s+kb].append(lambda kb=kb,s=s: rd_k(i+2,kb,s))
            def bar():
                p.wait(vm=[('V',i+1),('K',i+2)]); e('s_barrier')
            fill[15].append(bar)
            if dma:
                d0=cfg.get('d0',17); ds=cfg.get('ds',4)
                for n,(wh,t,H,un,so) in enumerate([('V',i+4,0,4+(i&3),'s29'),('V',i+4,1,4+(i&3),'s29'),('K',i+5,0,(i+1)&3,'s28'),('K',i+5,1,(i+1)&3,'s28')]):
                    box=[]
                    fill[d0+ds*n].append(lambda wh=wh,t=t,H=H,un=un,so=so,box=box: box.append(dma_kv(wh,t,H,un,so)))
                    fill[d0+ds*n+1].insert(0,lambda box=box: e(*box[0]))
                fill[31].append(lambda: e('s_add_u32 s29, s29, 8192\ns_add_u32 s28, s28, 8192'))
        for n in range(48):
            blk,j=divmod(n,8); qb=blk>>1
            if blk&1==0: pv(i,qb,j)
            elif not last: qk(i+1,qb,j&1,j>>1,R('v',NEGM+4*qb,4))
            for f in fill[n]: f()
    def steady(i):
        p.lq=[('v',i,db) for db in range(8) for j2 in (0,1)]+[('k',i+1,kb,s) for s in range(4) for kb in (0,1)]
        p.vq=sum([[('V',i+k)]*2+[('K',i+k+1)]*2 for k in (1,2,3)],[])
    assert p.vq==sum([[('V',k)]*2+[('K',k+1)]*2 for k in (1,2,3)],[]),p.vq
    steady(0)
    e('.p2align 4\nA_LOOP:')
    for i in range(4): step(i)
    lq,vq=list(p.lq),list(p.vq); steady(4); assert lq==p.lq and vq==p.vq,(lq,vq)
    e('s_sub_u32 s30, s30, 1\ns_cmp_lg_u32 s30, 0\ns_cbranch_scc1 A_LOOP')
    steady(28)
    for i in range(28,32): step(i,dma=False,last=(i==31))
    for qb in range(3):
        l=LSUM+qb
        for sw in ('v_permlane16_swap_b32','v_permlane32_swap_b32'):
            e(f'v_mov_b32 v{T0}, v{l}'); nf(f'{sw} v{l}, v{T0}'); nf(f'v_add_f32 v{l}, v{l}, v{T0}')
    e('s_cmp_lg_u32 s31, 0\ns_cbranch_scc1 A_STORE')
    e(f's_mov_b32 s38, {f2u(2.0**cfg.get("thr",60)):#x}')
    e(f'v_max3_f32 v{T0}, v{LSUM}, v{LSUM+1}, v{LSUM+2}\nv_add_f32 v{T0+1}, v{LSUM}, v{LSUM+1}\nv_add_f32 v{T0+1}, v{T0+1}, v{LSUM+2}')
    e(f'v_cmp_ngt_f32 vcc, s38, v{T0+1}')
    nf('s_cmp_lg_u64 vcc, 0'); e('s_cselect_b32 s38, 1, 0\ns_lshl_b32 s39, s3, 2\ns_add_u32 s39, s39, 0x10000')
    e(f'v_mov_b32 v{T0}, s39\nv_mov_b32 v{T0+1}, s38\nds_write_b32 v{T0}, v{T0+1}\nv_mov_b32 v{T0}, 0x10000')
    p.wait0(vm=False); e('s_barrier')
    e(f'ds_read_b128 v[{S0}:{S0+3}], v{T0}'); p.wait0(vm=False)
    e(f'v_or_b32 v{S0}, v{S0}, v{S0+1}\nv_or3_b32 v{S0}, v{S0}, v{S0+2}, v{S0+3}')
    nf(f'v_readfirstlane_b32 s38, v{S0}'); nf('s_cmp_lg_u32 s38, 0'); e('s_cbranch_scc1 A_FALLBACK')
    e('A_STORE:')
    e('v_lshlrev_b32 v0, 4, v0')
    for qb in range(3):
        e(f'v_rcp_f32 v{NEGM+2*qb}, v{LSUM+qb}'); nf(f'v_mov_b32 v{NEGM+2*qb+1}, v{NEGM+2*qb}')
    n=0
    for qb in range(3):
        for s in range(4):
            b=S0+8*(n%10); n+=1
            for k in range(8): nf(f'v_accvgpr_read_b32 v{b+k}, a{Oreg(2*s+(k>>2),qb)+(k&3)}')
            for k in range(4): e(f'v_pk_mul_f32 v[{b+2*k}:{b+2*k+1}], v[{b+2*k}:{b+2*k+1}], v[{NEGM+2*qb}:{NEGM+2*qb+1}]')
            for k in range(4): e(f'v_cvt_pk_bf16_f32 v{b+k}, v{b+2*k}, v{b+2*k+1}')
            so=['0','s36','s37'][qb]
            e(f'buffer_store_dwordx4 v[{b}:{b+3}], v0, s[24:27], {so} offen offset:{1024*s}'+cfg.get('ost',''))
    e('A_END:\ns_endpgm')
    e('A_FALLBACK:')
    p.vq=[];p.lq=[]
    e('s_mov_b32 s31, 1\ns_mov_b32 s39, 0')
    for qb in range(3): e(f'v_mov_b32 v{NEGM+4*qb}, 0xff800000')
    e('A_FB_LOOP:')
    for H in (0,1):
        tx,tag=dma_kv('K',0,H,0,'s39'); nf(tx,tag)
    p.wait0(); e('s_barrier')
    for s in range(4):
        for kb in (0,1): rd_k(0,kb,s)
    for qb in range(3):
        for s in range(4):
            for kb in (0,1): qk(0,qb,kb,s,'0')
    for qb in range(3):
        b=Sreg(qb,0); m=NEGM+4*qb
        for k in range(4): nf(f'v_max3_f32 v{m}, v{b+2*k}, v{b+2*k+1}, v{m}')
    e('s_barrier\ns_add_u32 s39, s39, 8192\ns_cmp_lt_u32 s39, 262144\ns_cbranch_scc1 A_FB_LOOP')
    p.vq=[]
    for a in [('K',0,0),('K',1,1),('V',0,4),('V',1,5),('K',2,2),('V',2,6),('K',3,3)]: dma_kv_now(*a)
    assert p.vq[-8:]==join_vq[-8:],(p.vq,join_vq)
    e('s_branch A_JOIN')
    return p
```

```python
from ir import *
MF='v_mfma_f32_16x16x32_bf16'
def gen_oproj(cfg):
    p=Prog(); e=p.e; nf=p.nopfix
    OF=8; WF=104; OA,WD,WA=1,2,3
    e('oproj_kernel:')
    e('s_cmp_ge_u32 s2, 240\ns_cbranch_scc1 O_END')
    e('s_load_dwordx2 s[40:41], s[0:1], 32\ns_load_dwordx4 s[44:47], s[0:1], 72\ns_load_dwordx2 s[42:43], s[0:1], 96')
    e('v_lshrrev_b32 v1, 6, v0\nv_and_b32 v0, 63, v0')
    nf('v_readfirstlane_b32 s3, v1')
    e('s_and_b32 s4, s2, 7\ns_lshr_b32 s5, s2, 3\ns_lshr_b32 s6, s4, 2\ns_and_b32 s4, s4, 3\ns_mul_i32 s4, s4, 3')
    e('s_mul_i32 s7, s5, 26\ns_lshr_b32 s7, s7, 8\ns_add_u32 s4, s4, s7\ns_mul_i32 s7, s7, 10\ns_sub_u32 s5, s5, s7')
    for qb in range(1,8): e(f's_mov_b32 s{48+qb}, {qb*131072}')
    for r in range(1,4): e(f's_mov_b32 s{56+r}, {r*10240}')
    e('s_lshl_b32 s32, s3, 14')
    e('v_and_b32 v6, 15, v0\nv_lshrrev_b32 v7, 4, v0\nv_bfe_u32 v8, v0, 2, 3\nv_lshrrev_b32 v9, 5, v0\nv_and_b32 v10, 3, v0')
    e(f'v_lshlrev_b32 v{OA}, 4, v0')
    e(f'v_mul_u32_u24 v11, 1280, v8\nv_lshl_add_u32 v11, v9, 6, v11\nv_lshl_add_u32 v{WD}, v10, 4, v11')
    e(f'v_lshrrev_b32 v11, 2, v6\nv_lshlrev_b32 v11, 6, v11\nv_lshl_add_u32 v11, v10, 4, v11\nv_and_b32 v12, 1, v7\nv_lshl_add_u32 v11, v12, 8, v11\nv_lshl_add_u32 v11, v9, 10, v11\nv_add_u32 v{WA}, s32, v11')
    e('s_mul_i32 s38, s3, 40960\nv_mul_u32_u24 v11, 2560, v6\nv_lshl_add_u32 v11, v7, 4, v11\nv_add_u32 v4, s38, v11')
    e('s_waitcnt lgkmcnt(0)\ns_cmp_eq_u32 s6, 0\ns_cselect_b32 s40, s40, s44\ns_cselect_b32 s41, s41, s45')
    e('s_mul_i32 s38, s6, 12582912\ns_lshl_b32 s39, s4, 20\ns_add_u32 s38, s38, s39\ns_add_u32 s38, s38, s32')
    e('s_add_u32 s8, s42, s38\ns_addc_u32 s9, s43, 0\ns_mov_b32 s10, 933888\ns_mov_b32 s11, 0x20000')
    e('s_mul_i32 s38, s3, 655360\ns_lshl_b32 s39, s5, 7\ns_add_u32 s38, s38, s39\ns_add_u32 s12, s40, s38\ns_addc_u32 s13, s41, 0\ns_sub_u32 s14, 5242880, s38\ns_mov_b32 s15, 0x20000')
    e('s_mul_i32 s38, s4, 327680\ns_mul_i32 s33, s6, 1280\ns_add_u32 s38, s38, s33\ns_add_u32 s38, s38, s39\ns_add_u32 s16, s46, s38\ns_addc_u32 s17, s47, 0\ns_sub_u32 s18, 3932160, s38\ns_mov_b32 s19, 0x20000')
    def w_dma(s,r):
        e(f's_add_u32 m0, s32, {(s&3)*4096+r*1024}')
        nf(f'buffer_load_dwordx4 v{WD}, s[12:15], {"s%d"%(56+r) if r else 0} offen lds',('w',s))
        if r==3: e(f'v_add_u32 v{WD}, 40960, v{WD}')
    def o_ld(s,qb):
        e(f'buffer_load_dwordx4 {R("v",OF+((s%3)*8+qb)*4,4)}, v{OA}, s[8:11], {"s%d"%(48+qb) if qb else 0} offen offset:{1024*(s&3)}',('o',s))
        if qb==7 and (s&3)==3: e(f'v_add_u32 v{OA}, 4096, v{OA}')
    def rd_w(s,nb,j2): e(f'ds_read_b64_tr_b16 {R("v",WF+nb*4+2*j2,2)}, v{WA} offset:{(s&3)*4096+2048*j2+512*(nb>>1)+8*(nb&1)}',('W',s,nb))
    for r in range(4): w_dma(0,r)
    for s in range(2):
        for r in range(4): w_dma(s+1,r)
        for qb in range(8): o_ld(s,qb)
    p.wait(vm=[('w',0)])
    for nb in range(4):
        for j2 in (0,1): rd_w(0,nb,j2)
    for s in range(16):
        p.wait(vm=[('o',s),('w',s+1)])
        fill={n:[] for n in range(32)}
        if s+3<16:
            for r in range(4): fill[2*r].append(lambda r=r: w_dma(s+3,r))
        if s+2<16:
            for qb in range(8): fill[8+2*qb].append(lambda qb=qb: o_ld(s+2,qb))
        if s+1<16:
            for nb in range(4):
                for j2 in (0,1): fill[8*nb+7].append(lambda nb=nb,j2=j2: rd_w(s+1,nb,j2))
        for nb in range(4):
            for qb in range(8):
                p.wait(lg=[('W',s,nb)])
                acc=R('a',(nb*8+qb)*4,4)
                e(f'{MF} {acc}, {R("v",WF+nb*4,4)}, {R("v",OF+((s%3)*8+qb)*4,4)}, {acc if s else 0}')
                for f in fill[nb*8+qb]: f()
    e(f'v_lshlrev_b32 v1, 4, v0\nv_add_u32 v2, s32, v1\ns_lshl_b32 s38, s3, 11\nv_add_u32 v1, s38, v1\nv_add_u32 v3, 0x10000, v1')
    e('s_barrier')
    for sd in (0,1):
        for qb in range(8):
            for ee in (0,1): nf(f'ds_write_b128 v2, {R("a",((2*sd+ee)*8+qb)*4,4)} offset:{(qb*2+ee)*1024}')
        p.wait0(vm=False); e('s_barrier')
        for u in range(8):
            for ee in (0,1): e(f'ds_read_b128 {R("v",8+u*8+ee*4,4)}, v{1 if u<4 else 3} offset:{(u&3)*16384+ee*1024}',('r',u))
        for u in range(1,8):
            p.wait(lg=[('r',u)])
            for k in range(4): e(f'v_pk_add_f32 v[{8+2*k}:{9+2*k}], v[{8+2*k}:{9+2*k}], v[{8+u*8+2*k}:{9+u*8+2*k}]')
        if sd==0: e('s_barrier')
        for k in range(4): e(f'v_cvt_pk_bf16_f32 v{80+4*sd+k}, v{8+2*k}, v{9+2*k}')
        e(f'buffer_store_dwordx4 v[{80+4*sd}:{83+4*sd}], v4, s[16:19], 0 offen offset:{64*sd}')
    e('O_END:\ns_endpgm')
    return p
```

```python
import sys, json
from ir import *
from k1 import gen_attn
from k2 import gen_oproj
NAME='concat_heads__gqa_block_cached__gqa_block_cached__near_ridge'
def build(cfg,out):
    ref=open(f'cdna_kernels/{NAME}.s.ref').read().split('\n')
    hdr=[l for l in ref if l.startswith(';') and '@launch' not in l and 'Override' not in l and 'grid=ceil' not in l]
    ks=[('attn_kernel',gen_attn(cfg),512,256,81920,256,112),('oproj_kernel',gen_oproj(cfg),240,512,131072,256,128)]
    T='\n'.join(hdr)+'\n'
    for n,p,g,b,l,nv,ao in ks: T+=f'; @launch kernel={n} grid=({g},1,1) block=({b},1,1) lds={l}\n'
    T+='.amdgcn_target "amdgcn-amd-amdhsa--gfx950"\n.text\n'
    for n,p,g,b,l,nv,ao in ks:
        bad=check(p.L)
        for x in bad: print('HAZARD',n,x)
        assert not bad
        T+=f'.globl {n}\n.p2align 8\n.type {n},@function\n'+p.text()
    T+='.section .rodata,"a"\n'
    for n,p,g,b,l,nv,ao in ks:
        T+=f'''.p2align 6
.amdhsa_kernel {n}
  .amdhsa_next_free_vgpr {nv}
  .amdhsa_next_free_sgpr 72
  .amdhsa_accum_offset {ao}
  .amdhsa_group_segment_fixed_size 0
  .amdhsa_kernarg_size 104
  .amdhsa_user_sgpr_count 2
  .amdhsa_user_sgpr_kernarg_segment_ptr 1
  .amdhsa_system_sgpr_workgroup_id_x 1
.end_amdhsa_kernel
'''
    open(out,'w').write(T)
if __name__=='__main__':
    cfg=json.loads(sys.argv[1]) if len(sys.argv)>1 else {}
    build(cfg,sys.argv[2] if len(sys.argv)>2 else f'cdna_kernels/{NAME}.s')
```
